```python
import torch

def _softmax(x, axis=-1):
    return torch.softmax(x, dim=axis)
def _gelu(x):
    return torch.nn.functional.gelu(x, approximate="tanh")
def _silu(x):
    return torch.nn.functional.silu(x)
def _sigmoid(x):
    return torch.sigmoid(x)
def _layernorm(x, axis=-1, eps=1e-5):
    m = x.mean(dim=axis, keepdim=True)
    v = x.var(dim=axis, keepdim=True, unbiased=False)
    return (x - m) / torch.sqrt(v + eps)
def _scatter_add(tgt, idx, src, axis=0):
    return tgt.clone().index_add_(axis, idx, src)
def _segment_sum(src, seg, n):
    out = torch.zeros((n,) + src.shape[1:], dtype=src.dtype)
    return out.index_add_(0, seg, src)
def _pad(x, pw):
    flat = tuple(v for pair in reversed(pw) for v in pair)
    return torch.nn.functional.pad(x, flat)

kernel_name = 'sequential_preLN__linear_attn_block__dense_activation_silu__prompt'

def setup_inputs():

    _w = (lambda a: (lambda t: t.to(torch.bfloat16) if t.is_floating_point() else t)(torch.as_tensor(a)))
    def _A_setup():
        B, S, D = 1, 2048, 640
        return {
            "x": _w((lambda *s: torch.randn(*s, dtype=torch.bfloat16) * 0.05)(B, S, D)),
            "wqkv": _w((lambda *s: torch.randn(*s, dtype=torch.bfloat16) * 0.05)(D, 3 * D)),
            "wo": _w((lambda *s: torch.randn(*s, dtype=torch.bfloat16) * 0.05)(D, D)),
        }
    _A_in = _A_setup()

    def _B_setup():
        B, S, D, F = 1, 2048, 640, 1728
        return {
            "x": _w((lambda *s: torch.randn(*s, dtype=torch.bfloat16) * 0.05)(B, S, D)),
            "w1": _w((lambda *s: torch.randn(*s, dtype=torch.bfloat16) * 0.8)(D, F) * (D ** -0.5)),
            "w2": _w((lambda *s: torch.randn(*s, dtype=torch.bfloat16) * 0.1)(F, D) * (F ** -0.5)),
        }
    _B_in = _B_setup()

    return {
        "A_x": _A_in["x"],
        "A_wqkv": _A_in["wqkv"],
        "A_wo": _A_in["wo"],
        "B_x": _B_in["x"],
        "B_w1": _B_in["w1"],
        "B_w2": _B_in["w2"],
    }

def reference(A_x, A_wqkv, A_wo, B_x, B_w1, B_w2):
    def _A_ref(x, wqkv, wo):
        B, S, D = x.shape
        H = 32; Dh = D // H
        qkv = (lambda x, *d: x.permute(*d))((x @ wqkv).reshape(B, S, 3, H, Dh), 2, 0, 3, 1, 4)
        q, k, v = qkv[0], qkv[1], qkv[2]
        phi = lambda t: torch.where(t > 0, t + 1, torch.exp(t)) + 1e-6
        pq, pk = phi(q), phi(k)
        kv = torch.einsum("bhsd,bhse->bhde", pk, v)
        z = torch.einsum("bhsd->bhd", pk)
        num = torch.einsum("bhqd,bhde->bhqe", pq, kv)
        den = torch.einsum("bhqd,bhd->bhq", pq, z)[..., None] + 1e-6
        o = num / den
        return (lambda x, *d: x.permute(*d))(o, 0, 2, 1, 3).reshape(B, S, D) @ wo

    def _B_ref(x, w1, w2):
        h = torch.einsum("bsd,df->bsf", x, w1)
        h = _silu(h)
        out = torch.einsum("bsf,fd->bsd", h, w2)
        return out

    x = A_x
    h = x + _A_ref(_layernorm(x, axis=-1), A_wqkv, A_wo)
    h2 = h + _B_ref(_layernorm(h, axis=-1), B_w1, B_w2)
    return h2
```

```python
class Asm:
    def __init__(self):
        self.lines = []
        self.uid = 0
    def __call__(self, s):
        for l in s.strip('\n').split('\n'):
            self.lines.append('    ' + l.strip())
    def label(self, name):
        self.lines.append(name + ':')
    def newlabel(self, p='L'):
        self.uid += 1
        return '%s_%d' % (p, self.uid)
    def comment(self, s):
        self.lines.append('    ; ' + s)
    def text(self):
        return '\n'.join(self.lines) + '\n'

def v(i, n=1):
    return 'v%d' % i if n == 1 else 'v[%d:%d]' % (i, i + n - 1)
def s(i, n=1):
    return 's%d' % i if n == 1 else 's[%d:%d]' % (i, i + n - 1)
def a(i, n=1):
    return 'a%d' % i if n == 1 else 'a[%d:%d]' % (i, i + n - 1)

WS_PQ4 = 0x000000
WS_PQX = 0x200000
WS_KVZ = 0x300000
WS_HF = 0x400000
WS_ST = 0x700000
WS_CS = 0x740000
WS_H1F = 0x800000
WS_WOF = 0x1000000
WS_W1F = 0x1100000
WS_W2F = 0x1400000
WS_STAMP = 0x2000000

def kernel_header(A, name):
    A.lines.append('.globl %s' % name)
    A.lines.append('.p2align 8')
    A.lines.append('.type %s,@function' % name)
    A.lines.append('%s:' % name)

def kernel_desc(name, vgpr, sgpr=102, accum=None):
    if accum is None:
        accum = (min(vgpr, 256) + 3) // 4 * 4
    return '''.p2align 6
.amdhsa_kernel %s
  .amdhsa_next_free_vgpr %d
  .amdhsa_next_free_sgpr %d
  .amdhsa_accum_offset %d
  .amdhsa_group_segment_fixed_size 0
  .amdhsa_kernarg_size 72
  .amdhsa_user_sgpr_count 2
  .amdhsa_user_sgpr_kernarg_segment_ptr 1
  .amdhsa_system_sgpr_workgroup_id_x 1
.end_amdhsa_kernel
''' % (name, vgpr, sgpr, accum)

def srd(A, dst, base_lo, base_hi, size, add=None):
    if add is None:
        A('s_mov_b32 s%d, s%d' % (dst, base_lo))
        A('s_and_b32 s%d, s%d, 0xffff' % (dst + 1, base_hi))
    else:
        A('s_add_u32 s%d, s%d, %s' % (dst, base_lo, add))
        A('s_addc_u32 s%d, s%d, 0' % (dst + 1, base_hi))
        A('s_and_b32 s%d, s%d, 0xffff' % (dst + 1, dst + 1))
    A('s_mov_b32 s%d, %s' % (dst + 2, size if isinstance(size, str) else hex(size)))
    A('s_mov_b32 s%d, 0x00020000' % (dst + 3))

import os
STAMP = bool(int(os.environ.get('STAMP', '0')))
STAMPV = 255
def stamp(A, idx):
    if not STAMP: return
    A('s_memrealtime s[100:101]')
    A('s_waitcnt lgkmcnt(0)')
    A('v_writelane_b32 v%d, s100, %d' % (STAMPV, idx))
def stamp_flush(A, n, ws_lo=10, ws_hi=11):
    if not STAMP: return
    L = A.newlabel('stf')
    A('v_readfirstlane_b32 s100, v0')
    A('s_cmp_lg_u32 s100, 0')
    A('s_cbranch_scc1 %s' % L)
    A('s_lshl_b32 s100, s2, 7')
    A('s_add_u32 s100, s100, %d' % WS_STAMP)
    srd(A, 96, ws_lo, ws_hi, 128, 's100')
    A('v_lshlrev_b32 v2, 3, v0')
    A('v_mov_b32 v%d, 0' % (STAMPV - 1))
    A('v_mov_b32 v4, v%d' % STAMPV)
    A('v_mov_b32 v5, 0')
    A('s_mov_b64 exec, 0xffff')
    A('buffer_store_dwordx2 v[4:5], v2, s[96:99], 0 offen')
    A('s_mov_b64 exec, -1')
    A.label(L)
```

```python
from common import *
import repack as rp
LDS = 131072 + 5 * 4096
LOG2E = 0x3fb8aa3b
NSLOT = 4
RB = 3840
TILES = [(0,1,2,3),(5,6,7,8),(4,9,10,11),(12,13,14,15),(16,17,18,19),(20,21,22,23),(24,25,26,27),(28,29,30,31)]

def mf(d, x, y, c=None):
    c = 'v[%d:%d]' % (d, d + 3) if c is None else c
    return 'v_mfma_f32_16x16x32_bf16 v[%d:%d], v[%d:%d], v[%d:%d], %s' % (d, d + 3, x, x + 3, y, y + 3, c)

def gen_k1(A, repack=None):
    name = 'k1_kernel'
    NT = 8
    kernel_header(A, name)
    L_end = name + '_end'
    vLane, vAe, vAo, vBl, vBh, vT0, vT1, vT2, vT3 = 1, 2, 3, 4, 5, 6, 7, 8, 9
    vRA = [10, 11]; vRAc = [12, 13]
    vRB = list(range(14, 22)); vRBc = list(range(22, 30))
    vOnes = 32
    AF = lambda st, t: 36 + st * 8 + t * 4
    BF = lambda st, j: 52 + st * 32 + j * 4
    ACC = lambda t, j: 116 + t * 32 + j * 4
    GR = lambda t: 180 + t * 4
    CS = lambda j: 188 + j * 4
    vE = 204
    if repack:
        A('s_cmp_ge_u32 s2, 256')
        A('s_cbranch_scc1 %s_rp' % name)
    else:
        A('s_cmp_ge_u32 s2, 256')
        A('s_cbranch_scc1 %s' % L_end)
    stamp(A, 0)
    A('s_load_dwordx2 s[8:9], s[0:1], 56')
    A('s_load_dwordx2 s[10:11], s[0:1], 64')
    A('s_load_dwordx4 s[4:7], s[0:1], 0')
    A('s_load_dwordx2 s[66:67], s[0:1], 16')
    A('s_load_dwordx4 s[80:83], s[0:1], 32')
    A('v_and_b32 v%d, 63, v0' % vLane)
    A('v_lshrrev_b32 v%d, 6, v0' % vT0)
    A('s_and_b32 s15, s2, 7')
    A('s_lshr_b32 s13, s2, 3')
    A('v_readfirstlane_b32 s14, v%d' % vT0)
    A('s_lshr_b32 s12, s13, 4')
    A('s_lshl_b32 s15, s15, 1')
    A('s_add_u32 s12, s12, s15')
    A('s_and_b32 s13, s13, 15')
    A('v_lshrrev_b32 v%d, 3, v%d' % (vT0, vLane))
    A('s_lshl_b32 s15, s14, 5')
    A('v_add_u32 v%d, s15, v%d' % (vT0, vT0))
    A('s_movk_i32 s16, 1280')
    A('v_mul_lo_u32 v%d, v%d, s16' % (vT0, vT0))
    A('v_and_b32 v%d, 7, v%d' % (vT1, vLane))
    A('v_lshrrev_b32 v%d, 4, v%d' % (vT2, vLane))
    A('v_xor_b32 v%d, v%d, v%d' % (vT1, vT1, vT2))
    A('v_lshlrev_b32 v%d, 4, v%d' % (vT3, vT1))
    A('v_add_u32 v%d, v%d, v%d' % (vAe, vT0, vT3))
    A('v_xor_b32 v%d, 64, v%d' % (vT3, vT3))
    A('v_add_u32 v%d, v%d, v%d' % (vAo, vT0, vT3))
    A('v_lshrrev_b32 v%d, 4, v%d' % (vT0, vLane))
    A('s_lshl_b32 s15, s14, 4')
    A('v_add_u32 v%d, s15, v%d' % (vT1, vT0))
    A('s_movk_i32 s16, %d' % RB)
    A('v_mul_lo_u32 v%d, v%d, s16' % (vT1, vT1))
    A('v_and_b32 v%d, 15, v%d' % (vT2, vLane))
    A('v_lshlrev_b32 v%d, 1, v%d' % (vT0, vT0))
    A('v_xor_b32 v%d, v%d, v%d' % (vT2, vT2, vT0))
    for hi, vB, sm in ((0, vBl, 40), (1, vBh, 42)):
        if hi:
            A('v_xor_b32 v%d, 8, v%d' % (vT2, vT2))
        A('v_lshlrev_b32 v%d, 4, v%d' % (vT3, vT2))
        A('v_add_u32 v%d, %d, v%d' % (vT0, 1280 - 96, vT3))
        A('v_cmp_lt_u32 vcc, 5, v%d' % vT2)
        A('s_nop 1')
        A('v_cndmask_b32 v%d, v%d, v%d, vcc' % (vB, vT3, vT0))
        A('v_add_u32 v%d, %d, v%d' % (vT0, 2560 - 192, vT3))
        A('v_cmp_lt_u32 vcc, 11, v%d' % vT2)
        A('s_nop 1')
        A('v_cndmask_b32 v%d, v%d, v%d, vcc' % (vB, vB, vT0))
        A('v_mov_b32 v%d, %d' % (vT0, 2560 + 64))
        A('v_cmp_eq_u32 vcc, 11, v%d' % vT2)
        A('s_nop 1')
        A('v_cndmask_b32 v%d, v%d, v%d, vcc' % (vB, vB, vT0))
        A('v_cmp_ne_u32 s[%d:%d], 5, v%d' % (sm, sm + 1, vT2))
        A('v_add_u32 v%d, v%d, v%d' % (vB, vB, vT1))
    A('s_mul_i32 s15, s13, 80')
    A('v_add_u32 v%d, s15, v%d' % (vBl, vBl))
    A('v_add_u32 v%d, s15, v%d' % (vBh, vBh))
    A('v_and_b32 v%d, 15, v%d' % (vT0, vLane))
    A('v_lshrrev_b32 v%d, 4, v%d' % (vT1, vLane))
    A('v_lshrrev_b32 v%d, 1, v%d' % (vT2, vT0))
    A('v_xor_b32 v%d, v%d, v%d' % (vT2, vT2, vT1))
    A('v_lshlrev_b32 v%d, 4, v%d' % (vT2, vT2))
    A('v_lshl_add_u32 v%d, v%d, 7, v%d' % (vT2, vT0, vT2))
    A('s_lshl_b32 s15, s14, 12')
    A('v_add_u32 v%d, s15, v%d' % (vRA[0], vT2))
    A('v_xor_b32 v%d, 64, v%d' % (vRA[1], vRA[0]))
    A('v_bfe_u32 v%d, v%d, 2, 2' % (vT0, vLane))
    A('v_lshl_add_u32 v%d, v%d, 3, v%d' % (vT2, vT1, vT0))
    A('v_lshlrev_b32 v%d, 8, v%d' % (vT2, vT2))
    A('v_add_u32 v%d, 16384, v%d' % (vT2, vT2))
    A('v_and_b32 v%d, 1, v%d' % (vT3, vT1))
    A('v_lshl_add_u32 v%d, v%d, 2, v%d' % (vT3, vT3, vT0))
    A('v_lshlrev_b32 v%d, 2, v%d' % (vT3, vT3))
    A('v_and_b32 v%d, 3, v%d' % (vT0, vLane))
    A('v_lshlrev_b32 v%d, 3, v%d' % (vT0, vT0))
    for j in range(NT):
        tb = sum(TILES[j][c] << (8 * c) for c in range(4))
        A('v_mov_b32 v%d, 0x%x' % (vT1, tb))
        A('v_lshrrev_b32 v%d, v%d, v%d' % (vT1, vT0, vT1))
        A('v_and_b32 v%d, 0xff, v%d' % (vT1, vT1))
        A('v_xor_b32 v%d, v%d, v%d' % (vT1, vT1, vT3))
        A('v_lshl_add_u32 v%d, v%d, 3, v%d' % (vRB[j], vT1, vT2))
    for i in range(4):
        A('v_mov_b32 v%d, 0x3f803f80' % (vOnes + i))
    for i in range(116, 204):
        A('v_mov_b32 v%d, 0' % i)
    A('s_waitcnt lgkmcnt(0)')
    A('s_mul_i32 s15, s12, %d' % (128 * 1280))
    srd(A, 16, 4, 5, 128 * 1280, 's15')
    srd(A, 20, 6, 7, 640 * RB)
    PT = dict(wo=66, w1=80, w2=82)
    A('s_mul_i32 s33, s2, 5')
    A('s_add_u32 s33, s33, s14')
    A('s_lshl_b32 s34, s14, 12')
    A('s_add_u32 s34, s34, %d' % rp.RP_LDS)
    rp.issue(A, 33, PT, vLane, [204, 205, 206, 207, 208, 209], 34)
    Lr = A.newlabel('k1_rp5')
    A('s_cmp_lg_u32 s14, 0')
    A('s_cbranch_scc1 %s' % Lr)
    A('s_add_u32 s35, s33, 4')
    A('s_add_u32 s45, s34, 16384')
    rp.issue(A, 35, PT, vLane, [204, 205, 206, 207, 208, 209], 45)
    A.label(Lr)
    A('s_lshl_b32 s15, s13, 12')
    A('s_add_u32 s15, s15, %d' % WS_KVZ)
    srd(A, 24, 10, 11, 4096, 's15')
    A('s_or_b32 s15, s12, s14')
    A('s_cmp_eq_u32 s15, 0')
    A('s_cselect_b32 s46, 4096, 0')
    A('s_mov_b32 s26, s46')
    A('v_lshlrev_b32 v%d, 4, v%d' % (vT0, vLane))
    for i in range(4):
        A('buffer_store_dwordx4 v[116:119], v%d, s[24:27], 0 offen offset:%d sc1' % (vT0, i * 1024))
    A('s_mov_b32 s26, 4096')
    srd(A, 28, 8, 9, 256)
    A('v_and_b32 v%d, 3, v%d' % (vT0, vLane))
    A('v_bfe_u32 v%d, v%d, 3, 1' % (vT1, vLane))
    A('v_lshl_add_u32 v%d, v%d, 2, v%d' % (vT0, vT1, vT0))
    A('v_lshlrev_b32 v%d, 1, v%d' % (vT0, vT0))
    A('v_xor_b32 v%d, 5, v%d' % (vT0, vT0))
    A('v_lshlrev_b32 v%d, 4, v%d' % (vT0, vT0))
    A('v_lshl_add_u32 v%d, v%d, 8, v%d' % (vT0, vLane, vT0))
    A('s_lshl_b32 s15, s14, 15')
    A('s_add_u32 s15, s15, 16384')
    A('v_add_u32 v%d, s15, v%d' % (vT0, vT0))
    A('v_mov_b32 v%d, 0x3f80' % (vE))
    for i in range(1, 4):
        A('v_mov_b32 v%d, 0' % (vE + i))
    A('ds_write_b128 v%d, v[%d:%d]' % (vT0, vE, vE + 3))
    for i in range(4):
        A('s_mov_b32 s%d, %d' % (48 + i, i * 9216))
        A('s_mov_b32 s%d, %d' % (52 + i, i * (4 * RB - 1024)))
    A('s_lshl_b32 s56, s14, 12')
    A('s_mov_b32 s36, s56')
    A('s_add_u32 s39, s56, 16384')
    RING = NSLOT * 32768
    def issueA():
        r = []
        for i in range(4):
            x = []
            if i == 0:
                x += ['s_mov_b32 m0, s36', 's_nop 0']
            x.append('buffer_load_dwordx4 v%d, s[16:19], s%d offen offset:%d lds' % (vAe if i % 2 == 0 else vAo, 48 + i, i * 1024))
            x.append('s_add_u32 s%d, s%d, 128' % (48 + i, 48 + i))
            if i == 3:
                x += ['s_add_u32 s36, s36, 32768', 's_and_b32 s36, s36, %d' % (RING - 1)]
            r.append(x)
        return r
    def issueB():
        r = []
        for i in range(4):
            x = []
            if i == 0:
                x += ['s_mov_b32 m0, s39']
            x.append('s_mov_b64 exec, s[%d:%d]' % ((40, 41) if i < 2 else (42, 43)))
            x.append('buffer_load_dwordx4 v%d, s[20:23], s%d offen offset:%d lds' % (vBl if i < 2 else vBh, 52 + i, i * 1024))
            x.append('s_mov_b64 exec, -1')
            x.append('s_add_u32 s%d, s%d, %d' % (52 + i, 52 + i, 64 * RB))
            if i == 3:
                x += ['s_add_u32 s39, s39, 32768', 's_and_b32 s39, s39, %d' % (RING - 1)]
            r.append(x)
        return r
    for c in range(3):
        for x in issueA() + issueB():
            for y in x: A(y)
    for x in issueA():
        for y in x: A(y)
    def setaddr(sreg):
        for i in range(2):
            A('v_add_u32 v%d, s%d, v%d' % (vRAc[i], sreg, vRA[i]))
        for j in range(NT):
            A('v_add_u32 v%d, s%d, v%d' % (vRBc[j], sreg, vRB[j]))
    def reads(step, st):
        r = []
        for t in range(2):
            r.append('ds_read_b128 v[%d:%d], v%d offset:%d' % (AF(st, t), AF(st, t) + 3, vRAc[step], t * 2048))
        for j in range(NT):
            for rd in range(2):
                r.append('ds_read_b64_tr_b16 v[%d:%d], v%d offset:%d' % (BF(st, j) + 2 * rd, BF(st, j) + 2 * rd + 1, vRBc[j], step * 8192 + rd * 1024))
        return r
    def mfmas(st):
        m = []
        for j in range(NT):
            for t in range(2):
                if j < 3:
                    m.append(mf(ACC(t, j), BF(st, j), AF(st, t)))
                else:
                    m.append(mf(ACC(t, j), AF(st, t), BF(st, j)))
        for t in range(2):
            m.append(mf(GR(t), AF(st, t), AF(st, t)))
        return m
    def phase(st_cur, rd, ph, dm):
        m = mfmas(st_cur)
        ri = 0; di = 0
        for i, x in enumerate(m):
            A(x)
            for _ in range(2):
                if ri < len(rd):
                    A(rd[ri]); ri += 1
            if i % 4 == 3 and di < len(dm):
                for y in dm[di]: A(y)
                di += 1
        Ls = A.newlabel(name + '_cs'); Lh = A.newlabel(name + '_ch')
        A('s_cmp_lg_u32 s58, %d' % ph)
        A('s_cbranch_scc1 %s' % Ls)
        A('s_cmp_lg_u32 s59, 0')
        A('s_cbranch_scc1 %s' % Lh)
        for jj in range(4):
            A(mf(CS(jj), vOnes, BF(st_cur, jj)))
        A('s_branch %s' % Ls)
        A.label(Lh)
        for jj in range(4):
            A(mf(CS(jj), vOnes, BF(st_cur, 4 + jj)))
        A.label(Ls)
    A('s_lshr_b32 s58, s14, 1')
    A('s_and_b32 s59, s14, 1')
    A('s_mov_b32 s37, 0')
    setaddr(37)
    stamp(A, 1)
    A('s_waitcnt vmcnt(20) lgkmcnt(0)')
    A('s_barrier')
    stamp(A, 2)
    A('v_mov_b32 v%d, 1' % vT0)
    A('s_lshl_b32 s15, s13, 2')
    A('v_mov_b32 v%d, s15' % vT1)
    A('s_lshr_b32 s30, s46, 4')
    A('s_mov_b64 exec, 1')
    A('buffer_store_dword v%d, v%d, s[28:31], 0 offen sc1' % (vT0, vT1))
    A('s_mov_b64 exec, -1')
    A('s_movk_i32 s30, 256')
    for x in reads(0, 0):
        A(x)
    A('s_mov_b32 s38, 0')
    A('s_waitcnt lgkmcnt(0)')
    Lloop = name + '_loop'
    A.label(Lloop)
    phase(0, reads(1, 1), 0, issueB())
    A('s_add_u32 s37, s37, 32768')
    A('s_and_b32 s37, s37, %d' % (RING - 1))
    A('s_cmp_ge_u32 s38, 6')
    A('s_cselect_b32 s18, 0, %d' % (128 * 1280))
    A('s_waitcnt lgkmcnt(0)')
    setaddr(37)
    A('s_waitcnt vmcnt(16)')
    A('s_barrier')
    phase(1, reads(0, 0), 1, issueA())
    A('s_add_u32 s38, s38, 1')
    A('s_cmp_lt_u32 s38, 10')
    A('s_waitcnt lgkmcnt(0)')
    A('s_cbranch_scc1 %s' % Lloop)
    stamp(A, 3)
    A('s_waitcnt vmcnt(0)')
    A('s_barrier')
    rp.finish(A, 33, PT, vLane, [204, 205], 208, 34, 10, 11)
    Lr = A.newlabel('k1_rp5f')
    A('s_cmp_lg_u32 s14, 0')
    A('s_cbranch_scc1 %s' % Lr)
    A('s_nop 2')
    rp.finish(A, 35, PT, vLane, [204, 205], 208, 45, 10, 11)
    A.label(Lr)
    T0, T1, T2, T3 = vT0, vT1, vT2, vT3
    ST_OFF, CS_OFF, M_OFF, M_SZ = 0, 1024, 4096, 9472
    vL15, vG = 10, 11
    A('v_and_b32 v%d, 15, v%d' % (vL15, vLane))
    A('v_lshrrev_b32 v%d, 4, v%d' % (vG, vLane))
    A('s_lshl_b32 s15, s14, 8')
    A('v_lshl_add_u32 v12, v%d, 3, s15' % vL15)
    A('s_mov_b32 s60, 0')
    A('s_mov_b32 s61, 0xffff')
    A('s_mov_b64 exec, s[60:61]')
    for t in range(2):
        A('ds_write_b32 v12, v%d offset:%d' % (ACC(t, 2), ST_OFF + t * 128))
    A('s_mov_b64 exec, -1')
    A('v_and_b32 v%d, 3, v%d' % (T0, vLane))
    for t in range(2):
        A('v_mov_b32 v%d, v%d' % (13 + t, GR(t)))
    for r in range(1, 4):
        A('v_cmp_eq_u32 vcc, %d, v%d' % (r, T0))
        A('s_nop 1')
        for t in range(2):
            A('v_cndmask_b32 v%d, v%d, v%d, vcc' % (13 + t, 13 + t, GR(t) + r))
    A('v_lshrrev_b32 v%d, 2, v%d' % (T1, vL15))
    A('v_cmp_eq_u32 vcc, v%d, v%d' % (T1, vG))
    A('s_nop 1')
    A('s_and_saveexec_b64 s[62:63], vcc')
    for t in range(2):
        A('ds_write_b32 v12, v%d offset:%d' % (13 + t, ST_OFF + 4 + t * 128))
    A('s_mov_b64 exec, -1')
    A('s_lshl_b32 s15, s58, 9')
    A('s_lshl_b32 s60, s59, 8')
    A('s_add_u32 s15, s15, s60')
    A('v_lshl_add_u32 v13, v%d, 2, s15' % vL15)
    A('s_mov_b64 exec, 0xffff')
    for jj in range(4):
        A('ds_write_b32 v13, v%d offset:%d' % (CS(jj), CS_OFF + jj * 64))
    A('s_mov_b64 exec, -1')
    A('s_waitcnt lgkmcnt(0)')
    A('s_barrier')
    for t in range(2):
        A('ds_read_b64 v[%d:%d], v12 offset:%d' % (14 + 2 * t, 15 + 2 * t, ST_OFF + t * 128))
    A('s_lshl_b32 s15, s14, 8')
    A('v_lshl_add_u32 v13, v%d, 5, s15' % vG)
    for t in range(2):
        for hh in range(2):
            A('ds_read_b128 v[%d:%d], v13 offset:%d' % (36 + 8 * t + 4 * hh, 39 + 8 * t + 4 * hh, ST_OFF + t * 128 + hh * 16))
    A('v_lshlrev_b32 v18, 4, v%d' % vG)
    for T in range(3):
        for pp in range(2):
            A('ds_read_b128 v[%d:%d], v18 offset:%d' % (52 + 8 * T + 4 * pp, 55 + 8 * T + 4 * pp, CS_OFF + pp * 512 + T * 64))
    A('v_lshlrev_b32 v19, 2, v%d' % vL15)
    for T in range(3, 8):
        for pp in range(2):
            A('ds_read_b32 v%d, v19 offset:%d' % (76 + 2 * (T - 3) + pp, CS_OFF + pp * 512 + T * 64))
    A('s_lshl_b32 s15, s13, 2')
    A('v_mov_b32 v20, s15')
    A('buffer_load_dword v21, v20, s[28:31], 0 offen sc1')
    A('s_waitcnt lgkmcnt(0)')
    A('s_mov_b32 s60, 0x3acccccd')
    A('s_mov_b32 s61, 0x3727c5ac')
    A('s_mov_b32 s62, 0x%x' % LOG2E)
    A('s_mov_b32 s63, 0x358637bd')
    def stats(vm, vr):
        A('v_mul_f32 v%d, s60, v%d' % (vm, vm))
        A('v_mul_f32 v%d, s60, v%d' % (vr, vr))
        A('v_fma_f32 v%d, -v%d, v%d, v%d' % (vr, vm, vm, vr))
        A('v_add_f32 v%d, s61, v%d' % (vr, vr))
        A('v_rsq_f32 v%d, v%d' % (vr, vr))
        A('v_sub_f32 v%d, 0, v%d' % (vm, vm))
    for t in range(2):
        stats(14 + 2 * t, 15 + 2 * t)
        for r in range(4):
            stats(36 + 8 * t + 2 * r, 37 + 8 * t + 2 * r)
    for T in range(3):
        for r in range(4):
            A('v_add_f32 v%d, v%d, v%d' % (52 + 8 * T + r, 52 + 8 * T + r, 56 + 8 * T + r))
    for T in range(3, 8):
        A('v_add_f32 v%d, v%d, v%d' % (76 + 2 * (T - 3), 76 + 2 * (T - 3), 77 + 2 * (T - 3)))
    tmp = [204, 205, 206, 207, 208, 209, 210, 211]
    def ln(lst):
        for (x, m, rs, c) in lst:
            A('v_fma_f32 v%d, v%d, v%d, v%d' % (x, m, c, x))
        for (x, m, rs, c) in lst:
            A('v_mul_f32 v%d, v%d, v%d' % (x, x, rs))
    def phi(lst):
        for i, (x, m, rs, c) in enumerate(lst):
            A('v_mul_f32 v%d, s62, v%d' % (tmp[i], x))
        for i, (x, m, rs, c) in enumerate(lst):
            A('v_exp_f32 v%d, v%d clamp' % (tmp[i], tmp[i]))
        for i, (x, m, rs, c) in enumerate(lst):
            A('v_max_f32 v%d, 0, v%d' % (x, x))
        for i, (x, m, rs, c) in enumerate(lst):
            A('v_add_f32 v%d, v%d, v%d' % (x, x, tmp[i]))
        for i, (x, m, rs, c) in enumerate(lst):
            A('v_add_f32 v%d, s63, v%d' % (x, x))
    A('s_lshl_b32 s15, s12, 3')
    A('s_lshl_b32 s60, s14, 1')
    A('s_add_u32 s15, s15, s60')
    A('s_lshl_b32 s64, s15, 14')
    A('s_lshl_b32 s60, s13, 10')
    A('s_add_u32 s64, s64, s60')
    A('s_add_u32 s64, s64, %d' % WS_PQ4)
    srd(A, 16, 10, 11, 16384 + 1024, 's64')
    A('s_lshl_b32 s64, s15, 12')
    A('s_lshr_b32 s60, s13, 2')
    A('s_lshl_b32 s60, s60, 10')
    A('s_add_u32 s64, s64, s60')
    A('s_and_b32 s60, s13, 3')
    A('s_lshl_b32 s60, s60, 2')
    A('s_add_u32 s64, s64, s60')
    A('s_add_u32 s64, s64, %d' % WS_PQX)
    srd(A, 20, 10, 11, 4096 + 1024, 's64')
    A('s_mov_b32 s60, 0x3acccccd')
    A('v_lshlrev_b32 v22, 3, v%d' % vLane)
    A('v_lshlrev_b32 v23, 4, v%d' % vL15)
    A('v_lshl_add_u32 v23, v%d, 1, v23' % vG)
    for T in range(3):
        lst = []
        for t in range(2):
            for r in range(4):
                lst.append((ACC(t, T) + r, 14 + 2 * t, 15 + 2 * t, 52 + 8 * T + r))
        ln(lst); phi(lst)
        for t in range(2):
            A('v_cvt_pk_bf16_f32 v%d, v%d, v%d' % (24 + 2 * t, ACC(t, T), ACC(t, T) + 1))
            A('v_cvt_pk_bf16_f32 v%d, v%d, v%d' % (25 + 2 * t, ACC(t, T) + 2, ACC(t, T) + 3))
        if T < 2:
            for t in range(2):
                A('s_movk_i32 s15, %d' % (t * 16384))
                A('buffer_store_dwordx2 v[%d:%d], v22, s[16:19], s15 offen offset:%d' % (24 + 2 * t, 25 + 2 * t, T * 512))
        else:
            A('s_mov_b64 exec, 0xffffffff')
            for t in range(2):
                A('s_movk_i32 s15, %d' % (t * 4096))
                A('buffer_store_short v%d, v23, s[20:23], s15 offen offset:0' % (24 + 2 * t))
                A('buffer_store_short_d16_hi v%d, v23, s[20:23], s15 offen offset:256' % (24 + 2 * t))
                A('buffer_store_short v%d, v23, s[20:23], s15 offen offset:512' % (25 + 2 * t))
                A('buffer_store_short_d16_hi v%d, v23, s[20:23], s15 offen offset:768' % (25 + 2 * t))
            A('s_mov_b64 exec, -1')
        A('s_nop 1')
    FR = lambda T: 88 + (T - 3) * 4
    A('v_cmp_gt_u32 s[64:65], 8, v%d' % vL15)
    for T in range(3, 8):
        lst = []
        for t in range(2):
            for r in range(4):
                lst.append((ACC(t, T) + r, 36 + 8 * t + 2 * r, 37 + 8 * t + 2 * r, 76 + 2 * (T - 3)))
        ln(lst)
        if T == 5:
            for i, (x, m, rs, c) in enumerate(lst):
                A('v_mov_b32 v%d, v%d' % (212 + i, x))
            phi(lst)
            for i, (x, m, rs, c) in enumerate(lst):
                A('v_cndmask_b32 v%d, v%d, v%d, s[64:65]' % (x, 212 + i, x))
        elif T < 5:
            phi(lst)
        for t in range(2):
            A('v_cvt_pk_bf16_f32 v%d, v%d, v%d' % (FR(T) + 2 * t, ACC(t, T), ACC(t, T) + 1))
            A('v_cvt_pk_bf16_f32 v%d, v%d, v%d' % (FR(T) + 2 * t + 1, ACC(t, T) + 2, ACC(t, T) + 3))
    A('s_nop 1')
    prods = [(6, 3), (6, 4), (7, 3), (7, 4), (7, 5), (5, 4), (5, 5)]
    em = {6: 0, 7: 1, 5: 2}; dm = {3: 0, 4: 1, 5: 2}
    D = lambda i: 116 + 4 * i
    for i, (E, Dd) in enumerate(prods):
        A(mf(D(i), FR(E), FR(Dd), '0'))
    for i, Dd in enumerate((3, 4, 5)):
        A(mf(D(7 + i), vOnes, FR(Dd), '0'))
    A('s_mul_i32 s15, s14, %d' % M_SZ)
    A('v_mul_u32_u24 v24, %d, v%d' % (4 * 48 * 4, vG))
    A('v_lshl_add_u32 v24, v%d, 2, v24' % vL15)
    A('v_add_u32 v24, s15, v24')
    A('s_nop 7')
    A('s_nop 3')
    for i, (E, Dd) in enumerate(prods):
        for r in range(4):
            A('ds_write_b32 v24, v%d offset:%d' % (D(i) + r, M_OFF + ((16 * em[E] + r) * 48 + 16 * dm[Dd]) * 4))
    A('s_mov_b64 exec, 0xffff')
    for i in range(3):
        A('ds_write_b32 v24, v%d offset:%d' % (D(7 + i), M_OFF + (48 * 48 + 16 * i) * 4))
    A('s_mov_b64 exec, -1')
    A('s_waitcnt lgkmcnt(0)')
    A('s_barrier')
    A('v_and_b32 v25, 31, v0')
    A('v_bfe_u32 v26, v0, 5, 2')
    A('s_mul_i32 s15, s58, 20')
    A('v_add_u32 v27, s15, v25')
    for it in range(6):
        if it < 5:
            A('v_add_u32 v28, s15, v26')
            A('v_add_u32 v28, %d, v28' % (4 * it))
            A('v_add_u32 v29, 8, v28')
            A('v_cmp_lt_u32 vcc, 31, v28')
            A('s_nop 1')
            A('v_cndmask_b32 v28, v28, v29, vcc')
        else:
            A('v_mov_b32 v28, 48')
        A('v_mul_u32_u24 v28, 48, v28')
        A('v_add_lshl_u32 v28, v28, v27, 2')
        for w in range(4):
            A('ds_read_b32 v%d, v28 offset:%d' % (36 + 4 * it + w, M_OFF + w * M_SZ))
    A('v_cmp_gt_u32 vcc, 16, v25')
    A('v_lshrrev_b32 v28, 2, v25')
    A('v_and_b32 v29, 3, v25')
    A('v_lshlrev_b32 v29, 2, v29')
    A('v_lshl_add_u32 v30, v28, 8, v29')
    A('v_lshl_add_u32 v31, v28, 7, v29')
    A('v_add_u32 v31, 1280, v31')
    A('v_subrev_u32 v28, 16, v25')
    A('v_lshlrev_b32 v29, 6, v28')
    A('v_add_u32 v29, 1024, v29')
    A('v_cndmask_b32 v30, v29, v30, vcc')
    A('v_lshlrev_b32 v29, 5, v28')
    A('v_add_u32 v29, 1792, v29')
    A('v_cndmask_b32 v31, v29, v31, vcc')
    A('v_mov_b32 v28, 4')
    A('v_mov_b32 v29, 16')
    A('v_cndmask_b32 v28, v28, v29, vcc')
    A('v_mul_lo_u32 v29, v28, v26')
    A('s_lshl_b32 s15, s58, 11')
    A('v_add3_u32 v30, v30, v29, s15')
    A('v_lshl_add_u32 v31, v29, 1, v31')
    A('v_add_u32 v31, s15, v31')
    A('v_lshlrev_b32 v29, 2, v28')
    A('s_waitcnt lgkmcnt(0)')
    for it in range(6):
        b = 36 + 4 * it
        A('v_add_f32 v%d, v%d, v%d' % (b, b, b + 1))
        A('v_add_f32 v%d, v%d, v%d' % (b + 2, b + 2, b + 3))
        A('v_add_f32 v%d, v%d, v%d' % (b, b, b + 2))
    stamp(A, 4)
    Lp = name + '_poll'
    A.label(Lp)
    A('s_waitcnt vmcnt(0)')
    A('v_readfirstlane_b32 s15, v21')
    A('s_cmp_eq_u32 s15, 0')
    A('s_cbranch_scc0 %s_go' % name)
    A('s_sleep 2')
    A('buffer_load_dword v21, v20, s[28:31], 0 offen sc1')
    A('s_branch %s' % Lp)
    A.label(name + '_go')
    stamp(A, 5)
    A('v_cmp_gt_u32 vcc, 20, v25')
    A('s_nop 1')
    A('s_and_saveexec_b64 s[62:63], vcc')
    for it in range(4):
        A('buffer_atomic_add_f32 v%d, v30, s[24:27], 0 offen' % (36 + 4 * it))
        A('v_add_u32 v30, v30, v29')
    A('buffer_atomic_add_f32 v%d, v31, s[24:27], 0 offen' % (36 + 16))
    A('v_add_u32 v31, v31, v28')
    A('buffer_atomic_add_f32 v%d, v31, s[24:27], 0 offen' % (36 + 20))
    A('s_mov_b64 exec, -1')
    if STAMP:
        A('s_waitcnt vmcnt(0)')
    stamp(A, 6)
    stamp_flush(A, 7)
    A('s_branch %s' % L_end)
    if repack:
        A.label(name + '_rp')
        repack(A, name, L_end)
    A.label(L_end)
    A('s_endpgm')
    return kernel_desc(name, 256)
```

```python
from common import *
RP_LDS = 131072

def decode(A, sb, ptrs):
    A('s_cmp_ge_u32 s%d, 540' % sb)
    A('s_cselect_b32 s91, 1, 0')
    A('s_cmp_ge_u32 s%d, 1080' % sb)
    A('s_cselect_b32 s91, 2, s91')
    A('s_mul_i32 s92, s91, 540')
    A('s_sub_u32 s92, s%d, s92' % sb)
    A('s_mul_hi_u32 s89, s92, 0x%x' % ((2**32 + 26) // 27))
    A('s_mul_i32 s93, s89, 27')
    A('s_sub_u32 s90, s92, s93')
    A('s_mul_hi_u32 s93, s92, 0x%x' % ((2**32 + 9) // 10))
    A('s_mul_i32 s94, s93, 10')
    A('s_sub_u32 s94, s92, s94')
    A('s_cmp_eq_u32 s91, 0')
    A('s_cselect_b32 s89, s89, s93')
    A('s_cselect_b32 s90, s90, s94')
    A('s_movk_i32 s88, 1280')
    A('s_cselect_b32 s88, 3456, s88')
    A('s_cselect_b32 s84, s%d, s%d' % (ptrs['w1'], ptrs['w2']))
    A('s_cselect_b32 s85, s%d, s%d' % (ptrs['w1'] + 1, ptrs['w2'] + 1))
    A('s_mov_b32 s86, %d' % (1728 * 1280))
    A('s_cselect_b32 s86, %d, s86' % (640 * 3456))
    A('s_cmp_eq_u32 s91, 2')
    A('s_cselect_b32 s84, s%d, s84' % ptrs['wo'])
    A('s_cselect_b32 s85, s%d, s85' % (ptrs['wo'] + 1))
    A('s_cselect_b32 s86, %d, s86' % (640 * 1280))
    A('s_and_b32 s85, s85, 0xffff')
    A('s_mov_b32 s87, 0x00020000')

def issue(A, sb, ptrs, vLane, vt, slds):
    decode(A, sb, ptrs)
    j, base, mult, t3, t4, off = vt
    A('v_lshrrev_b32 v%d, 3, v%d' % (j, vLane))
    A('v_add_u32 v%d, 12, v%d' % (t3, j))
    A('v_cmp_gt_u32 vcc, 4, v%d' % j)
    A('s_lshl_b32 s92, s89, 5')
    A('v_cndmask_b32 v%d, v%d, v%d, vcc' % (base, t3, j))
    A('v_add_u32 v%d, s92, v%d' % (base, base))
    A('v_mov_b32 v%d, 4' % mult)
    L = A.newlabel('rp_nwo')
    A('s_cmp_lg_u32 s91, 2')
    A('s_cbranch_scc1 %s' % L)
    A('s_mul_i32 s92, s89, 13')
    A('s_lshr_b32 s92, s92, 6')
    A('s_mul_i32 s93, s92, 5')
    A('s_sub_u32 s93, s89, s93')
    A('s_lshl_b32 s93, s93, 3')
    A('v_add_u32 v%d, s93, v%d' % (t3, j))
    A('v_mul_u32_u24 v%d, 13, v%d' % (t4, t3))
    A('v_lshrrev_b32 v%d, 6, v%d' % (t4, t4))
    A('v_mul_u32_u24 v%d, 5, v%d' % (base, t4))
    A('v_sub_u32 v%d, v%d, v%d' % (t3, t3, base))
    A('v_mul_u32_u24 v%d, 20, v%d' % (base, t4))
    A('s_mul_i32 s92, s92, 160')
    A('v_add_u32 v%d, s92, v%d' % (base, base))
    A('v_cmp_gt_u32 vcc, 4, v%d' % t3)
    A('v_mov_b32 v%d, 16' % t4)
    A('v_mov_b32 v%d, 1' % mult)
    A('v_cndmask_b32 v%d, v%d, v%d, vcc' % (t4, t4, t3))
    A('v_add_u32 v%d, v%d, v%d' % (base, base, t4))
    A('v_mov_b32 v%d, 4' % t4)
    A('v_cndmask_b32 v%d, v%d, v%d, vcc' % (mult, mult, t4))
    A.label(L)
    A('v_mul_lo_u32 v%d, v%d, s88' % (base, base))
    A('v_mul_lo_u32 v%d, v%d, s88' % (mult, mult))
    A('v_and_b32 v%d, 7, v%d' % (t3, vLane))
    A('v_lshl_add_u32 v%d, v%d, 4, v%d' % (base, t3, base))
    A('s_lshl_b32 s92, s90, 7')
    A('v_add_u32 v%d, s92, v%d' % (base, base))
    A('s_mov_b32 m0, s%d' % slds)
    for i in range(4):
        A('v_subrev_u32 v%d, %d, v%d' % (off, i * 1024, base))
        A('buffer_load_dwordx4 v%d, s[84:87], 0 offen offset:%d lds' % (off, i * 1024))
        if i < 3:
            A('v_add_u32 v%d, v%d, v%d' % (base, base, mult))

def finish(A, sb, ptrs, vLane, vt, vdata, slds, ws_lo, ws_hi):
    decode(A, sb, ptrs)
    a0, a1 = vt[0], vt[1]
    A('v_lshrrev_b32 v%d, 4, v%d' % (a0, vLane))
    A('v_bfe_u32 v%d, v%d, 2, 2' % (a1, vLane))
    A('v_lshl_add_u32 v%d, v%d, 3, v%d' % (a0, a0, a1))
    A('v_lshlrev_b32 v%d, 7, v%d' % (a0, a0))
    A('v_and_b32 v%d, 3, v%d' % (a1, vLane))
    A('v_lshl_add_u32 v%d, v%d, 3, v%d' % (a0, a1, a0))
    A('v_add_u32 v%d, s%d, v%d' % (a0, slds, a0))
    for jj in range(4):
        for rd in range(2):
            A('ds_read_b64_tr_b16 v[%d:%d], v%d offset:%d' % (vdata + 4 * jj + 2 * rd, vdata + 4 * jj + 2 * rd + 1, a0, rd * 512 + jj * 32))
    A('v_lshlrev_b32 v%d, 4, v%d' % (a1, vLane))
    A('s_mov_b32 s96, s%d' % ws_lo)
    A('s_and_b32 s97, s%d, 0xffff' % ws_hi)
    A('s_mov_b32 s98, 0x2000000')
    A('s_mov_b32 s99, 0x00020000')
    for jj in range(4):
        A('s_lshl_b32 s92, s90, 2')
        A('s_add_u32 s92, s92, %d' % jj)
        A('s_mul_i32 s93, s92, 205')
        A('s_lshr_b32 s93, s93, 10')
        A('s_mul_i32 s94, s93, 5')
        A('s_sub_u32 s94, s92, s94')
        A('s_cmp_eq_u32 s91, 1')
        A('s_cselect_b32 s95, 54, 20')
        A('s_mul_i32 s93, s93, s95')
        A('s_add_u32 s93, s93, s89')
        A('s_mul_i32 s93, s93, 5')
        A('s_add_u32 s93, s93, s94')
        A('s_mul_i32 s94, s89, 108')
        A('s_add_u32 s94, s94, s92')
        A('s_cmp_eq_u32 s91, 0')
        A('s_cselect_b32 s93, s94, s93')
        A('s_mov_b32 s94, %d' % WS_W2F)
        A('s_cselect_b32 s94, %d, s94' % WS_W1F)
        A('s_lshl_b32 s93, s93, 10')
        A('s_cmp_eq_u32 s91, 2')
        A('s_cselect_b32 s94, %d, s94' % WS_WOF)
        A('s_add_u32 s93, s93, s94')
        if jj == 0:
            A('s_waitcnt lgkmcnt(0)')
        A('buffer_store_dwordx4 v[%d:%d], v%d, s[96:99], s93 offen' % (vdata + 4 * jj, vdata + 4 * jj + 3, a1))
```

```python
import sys
from common import *
import k1
HDR = open('sequential_preLN__linear_attn_block__dense_activation_silu__prompt.s.ref').read().split('\n')
hdr = [l for l in HDR if l.startswith(';') and '@launch' not in l and 'Override' not in l]
def build(which, out):
    A = Asm()
    launches = []; descs = []
    import importlib
    specs = {'1': ('k1', 'gen_k1', 256, 256, 163840), '2': ('k2', 'gen_k2', 256, 256, 163840), '3': ('k3', 'gen_k3', 256, 256, 163840), '4': ('k4', 'gen_k4', 256, 256, 163840)}
    for k in which:
        m, f, g, b, lds = specs[k]
        mod = importlib.import_module(m)
        descs.append(getattr(mod, f)(A))
        launches.append('; @launch kernel=%s_kernel grid=(%d,1,1) block=(%d,1,1) lds=%d' % (m, g, b, getattr(mod, 'LDS', lds)))
    txt = '\n'.join(hdr) + '\n' + '\n'.join(launches) + '\n.amdgcn_target "amdgcn-amd-amdhsa--gfx950"\n.text\n' + A.text() + '.section .rodata,"a"\n' + ''.join(descs)
    open(out, 'w').write(txt)
if __name__ == '__main__':
    build(sys.argv[1], sys.argv[2])
```
